```python
import torch

def _softmax(x, axis=-1):
    return torch.softmax(x, dim=axis)

def _gelu(x):
    return torch.nn.functional.gelu(x, approximate='tanh')

def _silu(x):
    return torch.nn.functional.silu(x)

def _sigmoid(x):
    return torch.sigmoid(x)

def _layernorm(x, axis=-1, eps=1e-05):
    m = x.mean(dim=axis, keepdim=True)
    v = x.var(dim=axis, keepdim=True, unbiased=False)
    return (x - m) / torch.sqrt(v + eps)

def _scatter_add(tgt, idx, src, axis=0):
    return tgt.clone().index_add_(axis, idx, src)

def _segment_sum(src, seg, n):
    out = torch.zeros((n,) + src.shape[1:], dtype=src.dtype)
    return out.index_add_(0, seg, src)

def _pad(x, pw):
    flat = tuple((v for pair in reversed(pw) for v in pair))
    return torch.nn.functional.pad(x, flat)
kernel_name = 'standalone__tree_speculative_verify_tree_attention_over_candidate_token_tree__decode'

def setup_inputs():

    _w = lambda a: (lambda t: t.to(torch.bfloat16) if t.is_floating_point() else t)(torch.as_tensor(a))
    B, Hq, Hkv, T, C, D = (8, 32, 8, 1, 8192, 128)
    tree_mask = torch.zeros((B, T, T), dtype=float)
    for b in range(B):
        parent = torch.zeros(T, dtype=torch.int64)
        for i in range(1, T):
            parent[i] = int(torch.randint(0, i, (1,)).item())
        for i in range(T):
            j = i
            tree_mask[b, i, j] = 1.0
            while j > 0:
                j = parent[j]
                tree_mask[b, i, j] = 1.0
    return {'q': _w((lambda *s: torch.randn(*s, dtype=torch.bfloat16) * 0.8)(B, Hq, T, D)), 'k_cache': _w((lambda *s: torch.randn(*s, dtype=torch.bfloat16) * 0.8)(B, Hkv, C, D)), 'v_cache': _w((lambda *s: torch.randn(*s, dtype=torch.bfloat16) * 0.05)(B, Hkv, C, D)), 'k_tree': _w((lambda *s: torch.randn(*s, dtype=torch.bfloat16) * 0.8)(B, Hkv, T, D)), 'v_tree': _w((lambda *s: torch.randn(*s, dtype=torch.bfloat16) * 0.05)(B, Hkv, T, D)), 'tree_mask': _w(tree_mask)}

def reference(q, k_cache, v_cache, k_tree, v_tree, tree_mask):
    B, Hq, T, D = q.shape
    Hkv, C = (k_cache.shape[1], k_cache.shape[2])
    rep = Hq // Hkv
    kc = (lambda x, n, axis: torch.repeat_interleave(x, n, dim=axis))(k_cache, rep, axis=1)
    vc = (lambda x, n, axis: torch.repeat_interleave(x, n, dim=axis))(v_cache, rep, axis=1)
    kt = (lambda x, n, axis: torch.repeat_interleave(x, n, dim=axis))(k_tree, rep, axis=1)
    vt = (lambda x, n, axis: torch.repeat_interleave(x, n, dim=axis))(v_tree, rep, axis=1)
    k = torch.concatenate([kc, kt], axis=2)
    v = torch.concatenate([vc, vt], axis=2)
    scale = D ** (-0.5)
    scores = torch.einsum('bhqd,bhkd->bhqk', q, k) * scale
    ctx_mask = torch.ones((B, 1, T, C), dtype=scores.dtype)
    tm = tree_mask[:, None, :, :].clone()
    full_mask = torch.concatenate([ctx_mask, tm], axis=-1)
    scores = scores + (1.0 - full_mask) * -1000000000.0
    p = _softmax(scores, axis=-1)
    return torch.einsum('bhqk,bhkd->bhqd', p, v)
```

```python
import sys, json, math, struct
from asmlib import *

def f2u(x):
    return struct.unpack("<I", struct.pack("<f", x))[0]

LOG2E = 1.4426950408889634
CSC = (128 ** -0.5) * LOG2E

DOC = """; Tree-attention decode (T = 1): out[b,h] = softmax([q.K_cache, q.k_tree + mask] / sqrt(D)) [V_cache; v_tree]
; 256 single-wave workgroups; 4 of them share one (batch, kv-head) pair, 2048 keys each, all 4 q heads at once.
;            into slots of d_ws they emptied themselves at start; the elected one merges and writes the output
"""

def gen(name, R=3, flags="nt", hflags="sc1", oflags="sc1", stamp=False, out=None, spareK=False, kmid=False,
        wgmap="rot", halves=False, boost=0, tick=1, diag=None, vmode="pair", vwarm=False, tree2=False, rank=None, clear_at="start", ml16=False, klate=False, vpos="mid", kpos="end", trace=False, gate=0):
    nsplit, G, N = 4, 256, 64
    TB, SB = 8192, 512
    RK = R + 1 if (spareK or kmid or kpos != "end") else R
    RV = R + 1
    SOFF = RK * TB
    lds = SOFF + N * SB
    L = []; a = L.append
    vLane, vSw, vVoff, vT0, vT1, vM, vL, vA, vMn, vSl8, vSlot = 0, 2, 3, 4, 5, 6, 7, 8, 9, 10, 11
    vS = 12
    vP = (20, 36)
    vAt = 24
    vQ = 36
    vO = 52
    vKs, vKr = 84, 88
    vRem = 92
    vRing = 128
    nv = vRing + 32 * RV
    vMx = vAt
    vSp, vPa, vPw, vX = vKs, vKs + 1, vKs + 2, 40
    def Kr(t, j): return vRem + 16 * t + 4 * j
    def Vr(s, u): return vRing + 32 * s + 4 * u
    sK, sV = "s[24:27]", "s[28:31]"
    sOffK, sOffV, sTmp = "s32", "s33", "s34"
    sC, sSelLo, sSelHi = "s36", "s37", "s38"
    sPair, sSplit, sCnt, sTick = "s40", "s41", "s43", "s48"
    a(HEADER + f"; @launch grid=({G},1,1) block=(64,1,1) lds={lds}\n" + DOC.rstrip())
    a(f""".amdgcn_target "amdgcn-amd-amdhsa--gfx950"
.text
.globl {KNAME}
.p2align 8
.type {KNAME},@function
{KNAME}:
    s_cmp_ge_u32 s2, {G}
    s_cbranch_scc1 L_done
    s_load_dwordx16 s[4:19], s[0:1], 0
    s_load_dwordx2 s[20:21], s[0:1], 64     ; ws""")
    if stamp:
        a("    s_memrealtime s[60:61]")
    if wgmap == "rot":
        a(f"    s_lshr_b32 {sSplit}, s2, 6\n    s_lshl1_add_u32 {sPair}, {sSplit}, s2\n    s_and_b32 {sPair}, {sPair}, 63")
    else:
        a(f"    s_and_b32 {sPair}, s2, 63\n    s_lshr_b32 {sSplit}, s2, 6")
    a(f"""    v_lshrrev_b32 v{vT1}, 4, v{vLane}          ; g = lane >> 4
    v_lshlrev_b32 v{vT0}, 6, v{vT1}
    v_lshlrev_b32 v{vVoff}, 4, v{vLane}
    v_xor_b32 v{vKs}, v{vT0}, v{vVoff}
    v_xor_b32 v{vKs+1}, 16, v{vKs}
    v_xor_b32 v{vKs+2}, 32, v{vKs}
    v_xor_b32 v{vKs+3}, 48, v{vKs}
    s_lshl2_add_u32 {sOffK}, {sPair}, {sSplit}
    s_lshl_b32 {sOffK}, {sOffK}, 19
    s_bitset1_b32 {sOffK}, 13
    s_mov_b32 {sOffV}, {sOffK}
    s_mov_b32 s26, 0x8000000
    s_mov_b32 s27, 0x20000
    s_mov_b32 s30, 0x8000000
    s_mov_b32 s31, 0x20000
    s_lshl_b32 s35, {sPair}, 10
    s_waitcnt lgkmcnt(0)
    s_mov_b32 s24, s6
    s_and_b32 s25, s7, 0xffff""")
    def adv(r):
        a(f"    s_add_u32 {r}, {r}, 0x1000\n    s_bitset1_b32 {r}, 13")
    def issueK(s, half=None):
        for t in range(2):
            if half is not None and t != half: continue
            a(f"    s_mov_b32 m0, {s*TB + t*4096}")
            a(f"    s_sub_u32 {sTmp}, {sOffK}, 8192" if t == 0 else "    s_nop 0")
            for u in range(4):
                a(f"    buffer_load_dwordx4 v{vKs+u}, {sK}, {sTmp if t==0 else sOffK} offen offset:{1024*u} {flags} lds")
        if half != 0:
            adv(sOffK)
    def issueV(s, half=None):
        if half != 1:
            a(f"    s_sub_u32 {sTmp}, {sOffV}, 8192")
        for u in range(8):
            if half is not None and u // 4 != half: continue
            r = Vr(s, u)
            a(f"    buffer_load_dwordx4 v[{r}:{r+3}], v{vVoff}, {sV}, {sTmp if u<4 else sOffV} offen offset:{1024*(u&3)} {flags}")
        if half != 0:
            adv(sOffV)
    issueK(0)
    a(f"""    ; Q as MFMA B operand: column = head (lane&3, replicated 4x), 16-byte chunk g
    v_and_b32 v{vT0}, 3, v{vLane}
    v_lshlrev_b32 v{vT0}, 8, v{vT0}
    v_lshl_add_u32 v{vT0}, v{vT1}, 4, v{vT0}
    s_add_u32 s4, s4, s35
    s_addc_u32 s5, s5, 0
    s_mov_b32 s28, s8
    s_and_b32 s29, s9, 0xffff""")
    for j in range(4):
        a(f"    global_load_dwordx4 v[{vQ+4*j}:{vQ+4*j+3}], v{vT0}, s[4:5] offset:{64*j}")
    vVt, vMk, vKt = vO + 16, vA, 12
    a(f"""    s_cmp_lg_u32 {sSplit}, 0
    s_cbranch_scc1 L_notree_ld
    s_lshl_b32 s35, {sPair}, 8
    s_add_u32 s10, s10, s35
    s_addc_u32 s11, s11, 0
    s_add_u32 s12, s12, s35
    s_addc_u32 s13, s13, 0
    s_lshr_b32 s35, {sPair}, 3
    s_lshl_b32 s35, s35, 1
    s_add_u32 s14, s14, s35
    s_addc_u32 s15, s15, 0
    v_lshlrev_b32 v{vT0}, 4, v{vT1}            ; g*16
    v_mov_b32 v{vSl8}, 0""")
    if tree2:
        a(f"    v_and_b32 v{vMn}, 60, v{vLane}\n    v_lshlrev_b32 v{vMn}, 2, v{vMn}            ; g*64 + s*16")
    else:
        a(f"    v_lshlrev_b32 v{vMn}, 6, v{vT1}            ; g*64")
    for j in range(4):
        a(f"    global_load_dwordx4 v[{vKt+4*j}:{vKt+4*j+3}], v{vT0}, s[10:11] offset:{64*j}")
    vTr = vRem + 32
    if tree2:
        a(f"    global_load_dwordx4 v[{vTr}:{vTr+3}], v{vMn}, s[12:13]")
    else:
        for j in range(4):
            a(f"    global_load_dwordx4 v[{vVt+4*j}:{vVt+4*j+3}], v{vMn}, s[12:13] offset:{16*j}")
    a(f"    global_load_ushort v{vMk}, v{vSl8}, s[14:15]")
    a(f"""L_notree_ld:
    ; hand-off slot: ws + (pair*4 + split)*4096, planes +0 (O0..3), +1024 (O4..7), +2048 (m, l)
    s_lshl_b32 s45, {sPair}, 14
    s_add_u32 s20, s20, s45
    s_addc_u32 s21, s21, 0
""")
    if rank:
        a(f"    s_lshl_b32 s35, {sSplit}, 6\n    s_add_u32 s22, s18, s35\n    s_addc_u32 s23, s19, 0")
    a(f"""    s_lshl_b32 s35, {sPair}, 2
    s_add_u32 s18, s18, s35                    ; ticket word of this pair
    s_addc_u32 s19, s19, 0
    s_lshl_b32 s35, {sPair}, 10
    s_add_u32 s16, s16, s35                    ; output rows of this pair
    s_addc_u32 s17, s17, 0
    s_lshl_b32 s45, {sSplit}, 12
    v_add_u32 v{vSlot}, s45, v{vVoff}
    {"v_and_b32 v%d, 15, v%d" % (vSl8, vLane) if ml16 else "v_mov_b32 v%d, v%d" % (vSl8, vLane)}
    v_lshl_add_u32 v{vSl8}, v{vSl8}, 3, s45""")
    def clear(r):
        for i in range(4):
            a(f"    v_mov_b32 v{r+i}, -1")
        a(f"""    ; empty the own slot (complete long before the ticket is drawn: later counted waits cover it)
    global_store_dwordx4 v{vSlot}, v[{r}:{r+3}], s[20:21] {hflags}
    global_store_dwordx4 v{vSlot}, v[{r}:{r+3}], s[20:21] offset:1024 {hflags}
{"    s_mov_b64 exec, 0xffff" if ml16 else ""}
    global_store_dwordx2 v{vSl8}, v[{r}:{r+1}], s[20:21] offset:2048 {hflags}
{"    s_mov_b64 exec, -1" if ml16 else ""}""")
    if clear_at == "start": clear(vAt + 4)
    for s in range(1, R):
        issueK(s)
    if clear_at == "late": clear(vAt + 8)
    if vwarm == "s":
        a(f"    s_buffer_load_dword s49, {sV}, {sOffV}")
    elif vwarm:
        a(f"""    s_mov_b64 exec, 1
    buffer_load_dword v{vL}, v{vVoff}, {sV}, {sOffV} offen {flags}
    s_mov_b64 exec, -1""")
    a(f"""    ; K fragment read address: MFMA row i <-> key 4*(i&3) + (i>>2), position (4j+g) ^ i
    v_and_b32 v{vT0}, 3, v{vLane}
    v_bfe_u32 v{vMn}, v{vLane}, 2, 2
    v_lshlrev_b32 v{vKr}, 10, v{vT0}
    v_lshl_add_u32 v{vKr}, v{vMn}, 8, v{vKr}
    v_and_b32 v{vMn}, 15, v{vLane}
    v_xor_b32 v{vMn}, v{vMn}, v{vT1}
    v_lshl_add_u32 v{vKr}, v{vMn}, 4, v{vKr}
    v_xor_b32 v{vKr+1}, 64, v{vKr}
    v_xor_b32 v{vKr+2}, 0x80, v{vKr}
    v_xor_b32 v{vKr+3}, 0xc0, v{vKr}
    v_lshl_add_u32 v{vT0}, v{vT1}, 2, v{vT0}
    v_lshlrev_b32 v{vSw}, 4, v{vT0}
    v_add_u32 v{vSw}, {SOFF}, v{vSw}
    s_mov_b32 s54, 0x000f000f
    s_mov_b32 s55, 0x000f000f
    s_mov_b32 {sC}, {hex(f2u(CSC))}
    s_mov_b32 {sSelLo}, 0x05040100
    s_mov_b32 {sSelHi}, 0x07060302
""")
    if tree2:
        for i in range(32):
            a(f"    v_mov_b32 v{vO+i}, 0")
        a(f"    v_mov_b32 v{vM}, 0xff800000")
    a(f"""    s_cmp_lg_u32 {sSplit}, 0
    s_cbranch_scc1 {"L_main" if tree2 else "L_notree"}
    s_waitcnt vmcnt({8*R-8 + (1 if vwarm is True else 0)})""")
    for j in range(4):
        c = "0" if j == 0 else f"v[{vAt+4}:{vAt+7}]"
        a(f"    v_mfma_f32_16x16x32_bf16 v[{vAt+4}:{vAt+7}], v[{vKt+4*j}:{vKt+4*j+3}], v[{vQ+4*j}:{vQ+4*j+3}], {c}")
    a(f"    v_lshlrev_b32 v{vMk}, 16, v{vMk}")
    a(f"    v_sub_f32 v{vMk}, 1.0, v{vMk}")
    a(f"    v_mul_f32 v{vMk}, {hex(f2u(-1e9*LOG2E))}, v{vMk}")
    if tree2:
        a(f"    s_nop 4\n    v_fma_f32 v{vM}, v{vAt+4}, {sC}, v{vMk}")
    else:
        for r in range(4):
            for y in range(2):
                a(f"    v_lshlrev_b32 v{vO+4*(2*y)+r}, 16, v{vVt+4*r+y}")
                a(f"    v_and_b32 v{vO+4*(2*y+1)+r}, 0xffff0000, v{vVt+4*r+y}")
        for r in range(4):
            for y in range(2, 4):
                a(f"    v_mov_b32 v{vKt+2*r+y-2}, v{vVt+4*r+y}")
        for r in range(4):
            for y in range(2, 4):
                a(f"    v_lshlrev_b32 v{vO+4*(2*y)+r}, 16, v{vKt+2*r+y-2}")
                a(f"    v_and_b32 v{vO+4*(2*y+1)+r}, 0xffff0000, v{vKt+2*r+y-2}")
        a(f"""    v_fma_f32 v{vM}, v{vAt+4}, {sC}, v{vMk}
    s_branch L_main
L_notree:""")
        for i in range(32):
            a(f"    v_mov_b32 v{vO+i}, 0")
        a(f"    v_mov_b32 v{vM}, 0xff800000")
    a(f"""L_main:
    v_mov_b32 v{vMx}, 0xff800000""")

    def ktile(s, soff, nxt, rk=None):
        iss = issueK if nxt[0] == 'K' else issueV
        a(f"    s_waitcnt vmcnt({8*R-8})")
        if spareK: iss(nxt[1])
        if kmid: iss(nxt[1], 0)
        for j in range(4):
            for t in range(2):
                a(f"    ds_read_b128 v[{Kr(t,j)}:{Kr(t,j)+3}], v{vKr+j} offset:{s*TB + t*4096}")
        if kpos == "rd": iss(nxt[1])
        if kpos == "rdh": iss(nxt[1], 0)
        for j in range(4):
            if rk == "wait":
                if j == 0: a("    s_waitcnt lgkmcnt(0)")
            else:
                a(f"    s_waitcnt lgkmcnt({2*(3-j)})")
            for t in range(2):
                d = vS + 4 * t
                c = "0" if j == 0 else f"v[{d}:{d+3}]"
                a(f"    v_mfma_f32_16x16x32_bf16 v[{d}:{d+3}], v[{Kr(t,j)}:{Kr(t,j)+3}], v[{vQ+4*j}:{vQ+4*j+3}], {c}")
            if kpos == f"j{j}": iss(nxt[1])
        if rk == "draw":
            a("""    ; arrival rank at the end of phase 1 among the 64 workgroups of this split (bits 15:8 of word 16*split)
    s_mov_b32 s46, 0x100
    s_atomic_add s46, s[22:23], 0 glc""")
        if spareK: a("    s_nop 7")
        elif kmid:
            iss(nxt[1], 1); a("    s_nop 1")
        elif kpos == "rdh":
            iss(nxt[1], 1); a("    s_nop 1")
        elif klate or kpos != "end": a("    s_nop 6")
        else: iss(nxt[1])
        a(f"""    s_mov_b64 exec, s[54:55]
    ds_write_b128 v{vSw}, v[{vS}:{vS+3}] offset:{soff}
    ds_write_b128 v{vSw}, v[{vS+4}:{vS+7}] offset:{soff+256}
    s_mov_b64 exec, -1
    v_max3_f32 v{vT0}, v{vS}, v{vS+1}, v{vS+2}
    v_max3_f32 v{vT1}, v{vS+3}, v{vS+4}, v{vS+5}
    v_max3_f32 v{vMx}, v{vMx}, v{vS+6}, v{vS+7}
    v_max3_f32 v{vMx}, v{vMx}, v{vT0}, v{vT1}""")
        if klate: iss(nxt[1])
    nloop = N - R
    nit, rem = nloop // RK, nloop % RK
    if trace: a("    s_mov_b32 s70, 0\n    s_mov_b32 s68, s60\n    v_mov_b32 v1, 0")
    a(f"    s_mov_b32 {sCnt}, {nit}\nL_kloop:")
    for s in range(RK):
        ktile(s, SB * s, ('K', (s + R) % RK))
    a(f"    v_add_u32 v{vSw}, {SB*RK}, v{vSw}")
    def tr():
        if trace:
            a("    s_mov_b32 m0, s70\n    v_writelane_b32 v1, s68, m0\n    s_add_u32 s70, s70, 1\n    s_memrealtime s[68:69]")
    tr()
    a(f"    s_sub_u32 {sCnt}, {sCnt}, 1\n    s_cmp_lg_u32 {sCnt}, 0\n    s_cbranch_scc1 L_kloop")
    for s in range(rem):
        ktile(s, SB * s, ('K', (s + R) % RK))
    for k in range(R):
        ktile((rem + k) % RK, SB * (rem + k), ('V', k), None if not rank else ("draw" if k == 0 else "wait" if k == 1 else None))
    if vmode == "pair":
        a(f"""    ; ---- true max over this workgroup's keys (and the tree token)
    v_mov_b32 v{vT1}, v{vMx}
    v_subrev_u32 v{vPa}, {SB*RK*nit}, v{vSw}
    v_bfe_u32 v{vA}, v{vLane}, 2, 2            ; s = copy index: this lane converts score pair s
    v_permlane32_swap_b32 v{vMx}, v{vT1}
    v_max_f32 v{vMx}, v{vMx}, v{vT1}
    v_mov_b32 v{vT1}, v{vMx}
    v_lshl_add_u32 v{vPw}, v{vA}, 2, v{vPa}     ; packed pair goes to dword s of the fragment
    v_lshrrev_b32 v{vT0}, 1, v{vA}
    v_permlane16_swap_b32 v{vMx}, v{vT1}
    v_lshl_add_u32 v{vSp}, v{vT0}, 8, v{vPa}
    v_and_b32 v{vT0}, 1, v{vA}
    v_lshl_add_u32 v{vSp}, v{vT0}, 3, v{vSp}    ; score pair: plane s>>1, 8 bytes * (s&1)
    ds_read_b64 v[{vX}:{vX+1}], v{vSp}
    v_max_f32 v{vMx}, v{vMx}, v{vT1}
    v_mul_f32 v{vMx}, {sC}, v{vMx}
    v_max_f32 v{vMn}, v{vM}, v{vMx}
    v_sub_f32 v{vA}, v{vM}, v{vMn}
    v_exp_f32 v{vA}, v{vA}
    v_mov_b32 v{vM}, v{vMn}
    v_mul_f32 v{vL}, 0x3d800000, v{vA}
    s_cmp_lg_u32 {sSplit}, 0
    s_cbranch_scc1 L_vphase""")
    else:
        a(f"""    ; ---- true max over this workgroup's keys (and the tree token)
    v_mov_b32 v{vT1}, v{vMx}
    v_subrev_u32 v{vPa}, {SB*RK*nit}, v{vSw}
    s_nop 0
    v_permlane32_swap_b32 v{vMx}, v{vT1}
    v_max_f32 v{vMx}, v{vMx}, v{vT1}
    v_mov_b32 v{vT1}, v{vMx}
    s_nop 1
    v_permlane16_swap_b32 v{vMx}, v{vT1}
    v_max_f32 v{vMx}, v{vMx}, v{vT1}
    v_mul_f32 v{vMx}, {sC}, v{vMx}
    v_max_f32 v{vMn}, v{vM}, v{vMx}
    v_sub_f32 v{vA}, v{vM}, v{vMn}
    v_exp_f32 v{vA}, v{vA}
    v_mov_b32 v{vM}, v{vMn}
    v_mul_f32 v{vL}, 0x3e800000, v{vA}
    s_cmp_lg_u32 {sSplit}, 0
    s_cbranch_scc1 L_vphase""")
    vTw = 44
    if tree2:
        for k in range(4):
            a(f"    v_lshlrev_b32 v{vTw+2*k}, 16, v{vTr+k}\n    v_and_b32 v{vTw+2*k+1}, 0xffff0000, v{vTr+k}")
        for k in range(4):
            a(f"    v_pk_mul_f32 v[{vTw+2*k}:{vTw+2*k+1}], v[{vTw+2*k}:{vTw+2*k+1}], v[{vA}:{vA+1}] op_sel_hi:[1,0]")
    else:
        for i in range(0, 32, 2):
            a(f"    v_pk_mul_f32 v[{vO+i}:{vO+i+1}], v[{vO+i}:{vO+i+1}], v[{vA}:{vA+1}] op_sel_hi:[1,0]")
    a("L_vphase:")
    if clear_at == "mid": clear(vRem)
    if stamp:
        a("    s_memrealtime s[66:67]")
    def convert(off, pset, nxt_read):
        a(f"""    v_fma_f32 v{vX}, v{vX}, {sC}, -v{vM}
    v_fma_f32 v{vX+1}, v{vX+1}, {sC}, -v{vM}
    v_exp_f32 v{vX}, v{vX}
    v_exp_f32 v{vX+1}, v{vX+1}
    v_add_f32 v{vL}, v{vL}, v{vX}
    v_cvt_pk_bf16_f32 v{vT0}, v{vX}, v{vX+1}
    v_add_f32 v{vL}, v{vL}, v{vX+1}
    ds_write_b32 v{vPw}, v{vT0} offset:{off}
    ds_read_b128 v[{pset}:{pset+3}], v{vPa} offset:{off}""")
        if nxt_read:
            a(f"    ds_read_b64 v[{vX}:{vX+1}], v{vSp} offset:{off+SB}")
    if vmode == "pair":
        a("    s_waitcnt lgkmcnt(0)")
        convert(0, vP[0], True)
    def remote_loads():
        for i in range(1, nsplit):
            b = vRem + 12 * (i - 1)
            a(f"""    v_xor_b32 v{vT0}, {i*4096}, v{vSlot}
    v_xor_b32 v{vT1}, {i*4096}, v{vSl8}
    global_load_dwordx4 v[{b}:{b+3}], v{vT0}, s[20:21] {hflags}
    global_load_dwordx4 v[{b+4}:{b+7}], v{vT0}, s[20:21] offset:1024 {hflags}
    global_load_dwordx2 v[{b+8}:{b+9}], v{vT1}, s[20:21] offset:2048 {hflags}""")
    def vtile(j, off, remaining, nxt, pre=False, draw=False):
        s = j % RV; P = vP[j % 2] if vmode == "pair" else vP[0]
        last = remaining == 0
        if vmode == "full":
            a(f"""    ds_read_b128 v[{vS}:{vS+3}], v{vPa} offset:{off}
    ds_read_b128 v[{vS+4}:{vS+7}], v{vPa} offset:{off+256}""")
            if pre: issueV(nxt)
            a("    s_waitcnt lgkmcnt(0)")
            if (remaining == tick and not gate) or draw:
                a(f"""    ; election: the workgroup that draws ticket 3 merges
    s_mov_b32 {sTick}, 1
    s_atomic_add {sTick}, s[18:19], 0 glc""")
            for e in range(8):
                a(f"    v_fma_f32 v{vS+e}, v{vS+e}, {sC}, -v{vM}")
            for e in range(8):
                a(f"    v_exp_f32 v{vS+e}, v{vS+e}")
            a(f"    v_add_f32 v{vT0}, v{vS}, v{vS+1}")
            for q in range(4):
                a(f"    v_cvt_pk_bf16_f32 v{P+q}, v{vS+2*q}, v{vS+2*q+1}")
            a(f"""    v_add_f32 v{vT1}, v{vS+2}, v{vS+3}
    v_add_f32 v{vT0}, v{vT0}, v{vS+4}
    v_add_f32 v{vT1}, v{vT1}, v{vS+5}
    v_add_f32 v{vT0}, v{vT0}, v{vS+6}
    v_add_f32 v{vT1}, v{vT1}, v{vS+7}
    v_add_f32 v{vL}, v{vL}, v{vT0}
    v_add_f32 v{vL}, v{vL}, v{vT1}""")
        if not last and vmode == "full":
            a(f"    s_waitcnt vmcnt({8*((R if pre else R - 1) if nxt is not None else remaining)})")
            if nxt is not None and not pre and vpos == "mid": issueV(nxt)
        elif not last:
            if pre: issueV(nxt)
            infl = (R if pre else R - 1) if nxt is not None else remaining
            a(f"    s_waitcnt vmcnt({8*infl})")
            if nxt is not None and not pre and vpos == "mid": issueV(nxt)
            a("    s_waitcnt lgkmcnt(0)")
            if (remaining == tick and not gate) or draw:
                a(f"""    ; election: the workgroup that draws ticket 3 merges
    s_mov_b32 {sTick}, 1
    s_atomic_add {sTick}, s[18:19], 0 glc""")
            convert(off + SB, vP[(j + 1) % 2], remaining is None or remaining > 1)
        else:
            a(f"""    ; l over the lanes of a head while the last V tile is still in flight
    v_mov_b32 v{vT1}, v{vL}
    s_nop 1
    v_permlane32_swap_b32 v{vL}, v{vT1}
    v_add_f32 v{vL}, v{vL}, v{vT1}
    v_mov_b32 v{vT1}, v{vL}
    s_nop 1
    v_permlane16_swap_b32 v{vL}, v{vT1}
    v_add_f32 v{vL}, v{vL}, v{vT1}""")
            if vmode == "pair":
                a(f"""    s_nop 1
    v_add_f32_dpp v{vL}, v{vL}, v{vL} row_ror:4 row_mask:0xf bank_mask:0xf
    s_nop 1
    v_add_f32_dpp v{vL}, v{vL}, v{vL} row_ror:8 row_mask:0xf bank_mask:0xf""")
            a(f"""    s_waitcnt lgkmcnt(0)
{"    s_and_b32 " + sTick + ", " + sTick + ", 0xff" if rank else ""}
    s_cmp_lg_u32 {sTick}, {nsplit-1}
    s_cbranch_scc1 L_norem""")
            remote_loads()
            if halves:
                a(f"    s_mov_b32 s45, 1\n    s_waitcnt vmcnt({9+4})\n    s_branch L_lastv\nL_norem:\n    s_mov_b32 s45, 0\n    s_waitcnt vmcnt(4)\nL_lastv:")
            else:
                a(f"    s_waitcnt vmcnt(9)\n    s_branch L_lastv\nL_norem:\n    s_waitcnt vmcnt(0)\nL_lastv:")
        def perms(x, qs):
            b = vAt + 4 * (x % 3)
            for n, q in enumerate(qs):
                a(f"    v_perm_b32 v{b+n}, v{Vr(s,2*q+1)+(x>>1)}, v{Vr(s,2*q)+(x>>1)}, {sSelHi if x&1 else sSelLo}")
        def pv(x, h=None):
            b = vAt + 4 * (x % 3)
            if h is None:
                a(f"    v_mfma_f32_16x16x32_bf16 v[{vO+4*x}:{vO+4*x+3}], v[{b}:{b+3}], v[{P}:{P+3}], v[{vO+4*x}:{vO+4*x+3}]")
            else:
                a(f"    v_mfma_f32_16x16x16_bf16 v[{vO+4*x}:{vO+4*x+3}], v[{b}:{b+1}], v[{P+2*h}:{P+2*h+1}], v[{vO+4*x}:{vO+4*x+3}]")
        if last and halves:
            for h in range(2):
                if h == 1:
                    a("    s_cmp_eq_u32 s45, 0\n    s_cbranch_scc1 L_h0\n    s_waitcnt vmcnt(9)\n    s_branch L_h1\nL_h0:\n    s_waitcnt vmcnt(0)\nL_h1:")
                qs = (2*h, 2*h+1)
                perms(0, qs)
                for x in range(1, 8):
                    perms(x, qs); pv(x - 1, h)
                a("    s_nop 1"); pv(7, h)
        else:
            qs = (0, 1, 2, 3)
            perms(0, qs)
            for x in range(1, 8):
                perms(x, qs); pv(x - 1)
                if vpos == f"x{x}" and nxt is not None and not pre: issueV(nxt)
                if vpos == "half" and x == 3 and nxt is not None and not pre: issueV(nxt)
                if vpos.startswith("h") and vpos != "half" and nxt is not None and not pre:
                    if x == int(vpos[1]): issueV(nxt, 0)
                    if x == int(vpos[2]): issueV(nxt, 1)
            if vpos == "post" and nxt is not None and not pre: issueV(nxt)
            else: a("    s_nop 1")
            pv(7)
    nn = N - R - boost
    base = [0]
    def bump(n):
        for r in ((vSp, vPa, vPw) if vmode == "pair" else (vPa,)):
            a(f"    v_add_u32 v{r}, {SB*n}, v{r}")
    def run(j0, cnt, pre, lab):
        it, rm = cnt // RV, cnt % RV
        j = j0
        if it > 1:
            if j != base[0]:
                bump(j - base[0]); base[0] = j
            a(f"    s_mov_b32 {sCnt}, {it}\n{lab}:")
            for k in range(RV): vtile(j + k, SB * k, None, (j + k + R) % RV, pre)
            bump(RV)
            tr()
            a(f"    s_sub_u32 {sCnt}, {sCnt}, 1\n    s_cmp_lg_u32 {sCnt}, 0\n    s_cbranch_scc1 {lab}")
            j += it * RV; base[0] = j
        else:
            rm = cnt
        for k in range(rm): vtile(j + k, SB * (j + k - base[0]), None, (j + k + R) % RV, pre)
    if gate:
        it = nn // RV
        run(0, (it - gate - 1) * RV, False, "L_vloop")
        j0 = (it - gate - 1) * RV
        for k in range(RV): vtile(j0 + k, SB * k, None, (j0 + k + R) % RV, False, draw=(k == 0))
        bump(RV)
        a(f"    s_mov_b32 {sCnt}, {gate}\n    s_cmp_eq_u32 {sTick}, 0\n    s_cbranch_scc1 L_vslow\nL_vfast:")
        for k in range(RV): vtile(k, SB * k, None, (k + R) % RV, True)
        bump(RV)
        a(f"    s_sub_u32 {sCnt}, {sCnt}, 1\n    s_cmp_lg_u32 {sCnt}, 0\n    s_cbranch_scc1 L_vfast\n    s_branch L_vend\nL_vslow:")
        for k in range(RV): vtile(k, SB * k, None, (k + R) % RV, False)
        bump(RV)
        a(f"    s_sub_u32 {sCnt}, {sCnt}, 1\n    s_cmp_lg_u32 {sCnt}, 0\n    s_cbranch_scc1 L_vslow\nL_vend:")
        base[0] = it * RV
        for j in range(it * RV, nn): vtile(j, SB * (j - base[0]), None, (j + R) % RV, False)
    elif rank:
        assert vmode == "full" and boost == 0
        it = nn // RV
        a("    s_bfe_u32 s46, s46, 0x80008\n    s_mov_b32 s47, 0")
        for thr, nb in rank:
            a(f"    s_cmp_ge_u32 s46, {thr}\n    s_cselect_b32 s47, {nb}, s47")
        a(f"    s_sub_u32 {sCnt}, {it}, s47\n    s_cmp_eq_u32 s47, 0\n    s_cbranch_scc1 L_vloop\nL_vfast:")
        for k in range(RV): vtile(k, SB * k, None, (k + R) % RV, True)
        bump(RV)
        a("    s_sub_u32 s47, s47, 1\n    s_cmp_lg_u32 s47, 0\n    s_cbranch_scc1 L_vfast\nL_vloop:")
        for k in range(RV): vtile(k, SB * k, None, (k + R) % RV, False)
        bump(RV)
        a(f"    s_sub_u32 {sCnt}, {sCnt}, 1\n    s_cmp_lg_u32 {sCnt}, 0\n    s_cbranch_scc1 L_vloop")
        base[0] = it * RV
        for j in range(it * RV, nn): vtile(j, SB * (j - base[0]), None, (j + R) % RV, False)
    else:
        run(0, nn, False, "L_vloop")
    run(nn, boost, True, "L_vloopb")
    for k in range(R):
        j = N - R + k
        vtile(j, SB * (j - base[0]), R - 1 - k, None)
    if stamp:
        a("    s_memrealtime s[62:63]")
    vR = 12
    a(f"""    ; ---- compact: lane (g, s, h) keeps O[h][32g + 8s + x], x = 0..7
    s_mov_b32 s50, 0xf0f0f0f0
    s_mov_b32 s51, 0xf0f0f0f0
    s_mov_b32 s52, 0xff00ff00
    s_mov_b32 s53, 0xff00ff00
    v_mov_b32 v{vR+8}, v{vM}
    v_mov_b32 v{vR+9}, v{vL}
    s_cmp_eq_u32 {sTick}, {nsplit-1}
    s_nop 0""")
    for x in range(8):
        o = vO + 4 * x
        a(f"""    v_cndmask_b32 v{o}, v{o}, v{o+1}, s[50:51]
    v_cndmask_b32 v{o+2}, v{o+2}, v{o+3}, s[50:51]
    v_cndmask_b32 v{vR+x}, v{o}, v{o+2}, s[52:53]""")
    if tree2:
        a(f"    s_cmp_lg_u32 {sSplit}, 0\n    s_cbranch_scc1 L_notw")
        for k in range(4):
            a(f"    v_pk_add_f32 v[{vR+2*k}:{vR+2*k+1}], v[{vR+2*k}:{vR+2*k+1}], v[{vTw+2*k}:{vTw+2*k+1}]")
        a(f"L_notw:\n    s_cmp_eq_u32 {sTick}, {nsplit-1}")
    a("    s_cbranch_scc1 L_consumer")
    for k in range(10):
        a(f"    v_min_u32 v{vR+k}, -2, v{vR+k}")
    a(f"""    global_store_dwordx4 v{vSlot}, v[{vR}:{vR+3}], s[20:21] {hflags}
    global_store_dwordx4 v{vSlot}, v[{vR+4}:{vR+7}], s[20:21] offset:1024 {hflags}
{"    s_mov_b64 exec, 0xffff                  ; one row of 16 lanes holds (m, l) of all four heads" if ml16 else ""}
    global_store_dwordx2 v{vSl8}, v[{vR+8}:{vR+9}], s[20:21] offset:2048 {hflags}
    s_branch L_fin
L_consumer:
    s_mov_b32 s45, 0x400000
    v_and_b32 v{vSw}, 3, v{vLane}
    v_lshlrev_b32 v{vSw}, 8, v{vSw}
    v_and_b32 v{vMn}, 60, v{vLane}
    v_lshl_add_u32 v{vSw}, v{vMn}, 2, v{vSw}
L_poll:
    s_waitcnt vmcnt(0)""")
    regs = [vRem + 12 * i + k for i in range(nsplit - 1) for k in range(10)]
    a(f"    v_max3_u32 v{vT0}, v{regs[0]}, v{regs[1]}, v{regs[2]}")
    a(f"    v_max3_u32 v{vT1}, v{regs[3]}, v{regs[4]}, v{regs[5]}")
    rr = regs[6:]; k = 0
    while len(rr) >= 2:
        t = vT0 if k % 2 == 0 else vT1
        a(f"    v_max3_u32 v{t}, v{t}, v{rr[0]}, v{rr[1]}"); rr = rr[2:]; k += 1
    a(f"""    v_max_u32 v{vT0}, v{vT0}, v{vT1}
    v_cmp_eq_u32 vcc, -1, v{vT0}               ; any word still empty?
    s_cbranch_vccz L_ready
    s_sub_u32 s45, s45, 1
    s_cbranch_scc1 L_ready""")
    remote_loads()
    a("    s_branch L_poll\nL_ready:")
    parts = [vR] + [vRem + 12 * i for i in range(nsplit - 1)]
    a(f"    v_max3_f32 v{vT0}, v{parts[0]+8}, v{parts[1]+8}, v{parts[2]+8}\n    v_max_f32 v{vT0}, v{vT0}, v{parts[3]+8}")
    for p in parts:
        a(f"    v_sub_f32 v{p+8}, v{p+8}, v{vT0}")
    for p in parts:
        a(f"    v_exp_f32 v{p+8}, v{p+8}")
    a(f"    v_mul_f32 v{vT1}, v{parts[0]+9}, v{parts[0]+8}")
    for p in parts[1:]:
        a(f"    v_fmac_f32 v{vT1}, v{p+9}, v{p+8}")
    a(f"    v_rcp_f32 v{vT1}, v{vT1}")
    for k in (0, 2, 4, 6):
        p = parts[0]
        a(f"    v_pk_mul_f32 v[{vR+k}:{vR+k+1}], v[{p+k}:{p+k+1}], v[{p+8}:{p+9}] op_sel_hi:[1,0]")
    for p in parts[1:]:
        for k in (0, 2, 4, 6):
            a(f"    v_pk_fma_f32 v[{vR+k}:{vR+k+1}], v[{p+k}:{p+k+1}], v[{p+8}:{p+9}], v[{vR+k}:{vR+k+1}] op_sel_hi:[1,0,1]")
    for k in (0, 2, 4, 6):
        a(f"    v_pk_mul_f32 v[{vR+k}:{vR+k+1}], v[{vR+k}:{vR+k+1}], v[{vT0}:{vT1}] op_sel:[0,1] op_sel_hi:[1,1]")
    for k in range(4):
        a(f"    v_cvt_pk_bf16_f32 v{vR+k}, v{vR+2*k}, v{vR+2*k+1}")
    a(f"    global_store_dwordx4 v{vSw}, v[{vR}:{vR+3}], s[16:17] {oflags}")
    a("L_fin:")
    if trace:
        a(f"""    s_mov_b64 exec, -1
    s_waitcnt vmcnt(0) lgkmcnt(0)
    s_mov_b32 m0, s70
    v_writelane_b32 v1, s68, m0
    s_load_dwordx2 s[20:21], s[0:1], 64
    s_add_u32 s70, s70, 1
    s_mov_b32 m0, s70
    v_writelane_b32 v1, s62, m0
    s_getreg_b32 s50, hwreg(HW_REG_XCC_ID)
    v_writelane_b32 v1, s50, 63
    s_lshl_b32 s49, s2, 8
    s_add_u32 s49, s49, 0x10000000
    s_waitcnt lgkmcnt(0)
    s_add_u32 s20, s20, s49
    s_addc_u32 s21, s21, 0
    v_lshlrev_b32 v4, 2, v0
    global_store_dword v4, v1, s[20:21]
    s_endpgm""")
    if stamp:
        a(f"""    s_waitcnt vmcnt(0) lgkmcnt(0)
    s_memrealtime s[64:65]
    s_load_dwordx2 s[20:21], s[0:1], 64
    s_getreg_b32 s50, hwreg(HW_REG_XCC_ID)
    s_and_b32 s50, s50, 15
    s_lshl_b32 s45, {sTick}, 8
    s_or_b32 s50, s50, s45
    s_sub_u32 s66, s66, s60
    s_lshl_b32 s66, s66, 16
    s_or_b32 s50, s50, s66
    s_lshl_b32 s49, s2, 4
    s_add_u32 s49, s49, 0x10000000
    s_waitcnt lgkmcnt(0)
    s_add_u32 s20, s20, s49
    s_addc_u32 s21, s21, 0
    v_mov_b32 v4, s60
    v_mov_b32 v5, s64
    v_mov_b32 v6, s50
    v_mov_b32 v7, s62
    v_mov_b32 v1, 0
    s_mov_b64 exec, 1
    global_store_dwordx4 v1, v[4:7], s[20:21]""")
    a("L_done:\n    s_endpgm")
    a(kd(KNAME, nv, 72))
    path = out or (name + ".s")
    open(path, "w").write("\n".join(L) + "\n")
    return build(path)

if __name__ == "__main__":
    cfgs = json.loads(sys.argv[1])
    outs = [gen(n, **c) for n, c in cfgs.items()]
    print(" ".join(outs))
    print(", ".join(f'"work/{o}"' for o in outs))
```
